```python
import torch

def _softmax(x, axis=-1):
    return torch.softmax(x, dim=axis)
def _gelu(x):
    return torch.nn.functional.gelu(x, approximate="tanh")
def _silu(x):
    return torch.nn.functional.silu(x)
def _sigmoid(x):
    return torch.sigmoid(x)
def _layernorm(x, axis=-1, eps=1e-5):
    m = x.mean(dim=axis, keepdim=True)
    v = x.var(dim=axis, keepdim=True, unbiased=False)
    return (x - m) / torch.sqrt(v + eps)
def _scatter_add(tgt, idx, src, axis=0):
    return tgt.clone().index_add_(axis, idx, src)
def _segment_sum(src, seg, n):
    out = torch.zeros((n,) + src.shape[1:], dtype=src.dtype)
    return out.index_add_(0, seg, src)
def _pad(x, pw):
    flat = tuple(v for pair in reversed(pw) for v in pair)
    return torch.nn.functional.pad(x, flat)

kernel_name = 'standalone__swiglu_ffn__decode'

def setup_inputs():

    _w = (lambda a: (lambda t: t.to(torch.bfloat16) if t.is_floating_point() else t)(torch.as_tensor(a)))
    B, S, D, F = 4, 1, 1024, 3584
    return {
        "x": _w((lambda *s: torch.randn(*s, dtype=torch.bfloat16) * 0.05)(B, S, D)),
        "w_gate": _w((lambda *s: torch.randn(*s, dtype=torch.bfloat16) * 0.05)(D, F)),
        "w_up": _w((lambda *s: torch.randn(*s, dtype=torch.bfloat16) * 0.05)(D, F)),
        "w_down": _w((lambda *s: torch.randn(*s, dtype=torch.bfloat16) * 0.05)(F, D)),
    }

def reference(x, w_gate, w_up, w_down):
    g = _silu(x @ w_gate)
    u = x @ w_up
    return (g * u) @ w_down
```

```python
import sys

P1BASE = 0
WDBASE = 65536
XBASE  = 98304
ZBASE  = 102400
PART   = 103424
HBASE  = 107520
LDS    = 108032
R1 = 4096
R2 = 0x80000
NAME = "standalone__swiglu_ffn__decode"

HEADER = open("standalone__swiglu_ffn__decode.s.ref").read().split("; Override launch")[0]

def gen(stamps=False, prefetch=True, maxpoll=200000, st1="sc1", ld1="sc1", st2="sc1", ld2="sc1", outfl="", pre=6):
    L = []
    a = lambda s: L.append("    " + s)
    lab = lambda s: L.append(s + ":")
    def stamp(i):
        if stamps: a(f"s_memrealtime s[{64+2*i}:{65+2*i}]")
    stamp(0)
    a("s_load_dwordx8 s[4:11], s[0:1], 0")
    a("s_load_dwordx2 s[16:17], s[0:1], 48")
    a("s_load_dwordx2 s[12:13], s[0:1], 32")
    a("v_lshrrev_b32 v1, 6, v0")
    a("s_cmp_ge_u32 s2, 256")
    a("s_cbranch_scc1 L_end")
    a("v_readfirstlane_b32 s3, v1")
    a("v_and_b32 v2, 63, v0")
    a("s_and_b32 s20, s2, 7")
    a("s_lshr_b32 s21, s2, 3")
    a("s_and_b32 s22, s21, 3")
    a("s_lshr_b32 s23, s21, 2")
    a("s_cmp_eq_u32 s23, 7")
    a("s_cselect_b32 s24, 1, 0")
    a("s_cselect_b32 s23, 3, s23")
    a("s_lshl_b32 s25, s20, 3")
    a("s_add_u32 s25, s25, s23")
    a("s_lshl_b32 s26, s23, 3")
    a("s_add_u32 s26, s26, 7")
    a("s_cmp_eq_u32 s20, 7")
    a("s_cselect_b32 s25, s26, s25")
    a("s_cselect_b32 s26, s24, 0")
    a("s_cmp_lg_u32 s26, 0")
    a("s_cbranch_scc1 L_end")
    a("s_and_b32 s26, s25, 7")
    a("s_cmp_eq_u32 s26, 3")
    a("s_cselect_b32 s26, 1, 0")
    a("v_lshrrev_b32 v4, 3, v2")
    a("v_lshrrev_b32 v5, 2, v2")
    a("v_and_b32 v6, 4, v5")
    a("v_and_b32 v7, 7, v2")
    a("v_xor_b32 v6, v6, v7")
    a("v_lshlrev_b32 v6, 4, v6")
    a("v_and_b32 v8, 3, v5")
    a("v_lshrrev_b32 v9, 4, v2")
    a("v_and_b32 v10, 3, v2")
    a("v_lshlrev_b32 v11, 5, v9")
    a("v_lshl_add_u32 v11, v10, 3, v11")
    a("v_lshlrev_b32 v12, 5, v8")
    a("v_and_b32 v12, 64, v12")
    a("v_xor_b32 v11, v11, v12")
    a("v_lshl_add_u32 v11, v8, 7, v11")
    a("v_cmp_eq_u32 vcc, v8, v9")
    a("v_lshlrev_b32 v12, 4, v10")
    a(f"v_mov_b32 v13, {ZBASE}")
    a("s_mov_b32 s38, 7340032")
    a("s_mov_b32 s39, 0x20000")
    a("s_cmp_ge_u32 s3, 4")
    a("s_cbranch_scc1 L_ph2")
    a("v_mul_u32_u24 v3, 7168, v4")
    a("v_add_u32 v3, v3, v6")
    a("v_lshlrev_b32 v14, 11, v10")
    a("v_lshl_add_u32 v14, v5, 4, v14")
    a("s_lshl_b32 s27, s3, 10")
    a(f"s_add_u32 s28, s27, {XBASE}")
    a("v_add_u32 v12, s28, v12")
    a("v_cndmask_b32 v12, v13, v12, vcc")
    a("s_lshl_b32 s29, s3, 14")
    a("v_add_u32 v11, s29, v11")
    a("s_lshr_b32 s30, s22, 1")
    a("s_lshl_b32 s30, s30, 9")
    a("s_lshl_b32 s31, s24, 8")
    a("s_add_u32 s30, s30, s31")
    a("s_sub_u32 s31, 7, s26")
    a("s_lshl_b32 s31, s3, s31")
    a("s_add_u32 s30, s30, s31")
    a("s_mul_i32 s31, s30, 7168")
    a("s_lshl_b32 s32, s25, 7")
    a("s_add_u32 s31, s31, s32")
    a("s_lshl_b32 s30, s30, 1")
    for r in range(16, 20): a(f"v_mov_b32 v{r}, 0")
    a("v_lshl_add_u32 v15, v2, 4, v13")
    a("ds_write_b128 v15, v[16:19]")
    a("s_mov_b32 s42, 8192")
    a("s_mov_b32 s43, 0x20000")
    a("s_and_b32 s33, s22, 1")
    a("s_waitcnt lgkmcnt(0)")
    a("s_cselect_b32 s36, s8, s6")
    a("s_cselect_b32 s37, s9, s7")
    a("s_mov_b32 s40, s4")
    a("s_mov_b32 s41, s5")
    a("s_mov_b32 m0, s28")
    a("s_load_dword s34, s[16:17], 0")
    stamp(1)
    a("buffer_load_dwordx4 v14, s[40:43], s30 offen lds")
    a("s_cmp_lg_u32 s26, 0")
    a("s_cbranch_scc1 L_p1_setB")
    a(f"s_add_u32 s35, s31, {8*57344}")
    a("s_add_u32 s33, s29, 8192")
    for j in range(8):
        a("s_mov_b32 m0, s33")
        a("s_add_u32 s33, s33, 1024")
        a("buffer_load_dwordx4 v3, s[36:39], s35 offen nt lds")
        if j < 7: a("s_add_u32 s35, s35, 57344")
    lab("L_p1_setB")
    for j in range(8):
        a("s_mov_b32 m0, s29")
        a("s_add_u32 s29, s29, 1024")
        a("buffer_load_dwordx4 v3, s[36:39], s31 offen nt lds")
        if j < 7: a("s_add_u32 s31, s31, 57344")
    a("s_waitcnt lgkmcnt(0)")
    a("s_barrier")
    stamp(2)
    a("s_add_u32 s34, s34, 1")
    a("s_mov_b32 s44, s16")
    a("s_mov_b32 s45, s17")
    a("s_mov_b32 s46, 0x10000000" if stamps else "s_mov_b32 s46, 0x200000")
    a("s_mov_b32 s47, 0x20000")
    a("s_waitcnt vmcnt(8)")
    for j in range(8):
        a(f"ds_read_b128 v[{32+4*j}:{35+4*j}], v12 offset:{j*64}")
    a("s_cmp_lg_u32 s26, 0")
    a("s_cbranch_scc1 L_p1_procB")
    for j in range(8, 16):
        a(f"ds_read_b128 v[{32+4*j}:{35+4*j}], v12 offset:{j*64}")
    for j in range(8, 16):
        b = 96 + 4*(j-8)
        a(f"ds_read_b64_tr_b16 v[{b}:{b+1}], v11 offset:{j*1024}")
        a(f"ds_read_b64_tr_b16 v[{b+2}:{b+3}], v11 offset:{j*1024+512}")
    a("s_waitcnt lgkmcnt(0)")
    for j in range(8, 16):
        b = 96 + 4*(j-8)
        a(f"v_mfma_f32_16x16x32_bf16 v[16:19], v[{32+4*j}:{35+4*j}], v[{b}:{b+3}], v[16:19]")
    lab("L_p1_procB")
    for j in range(8):
        b = 96 + 4*j
        a(f"s_waitcnt vmcnt({7-j})")
        a(f"ds_read_b64_tr_b16 v[{b}:{b+1}], v11 offset:{j*1024}")
        a(f"ds_read_b64_tr_b16 v[{b+2}:{b+3}], v11 offset:{j*1024+512}")
        a("s_waitcnt lgkmcnt(0)")
        a(f"v_mfma_f32_16x16x32_bf16 v[16:19], v[{32+4*j}:{35+4*j}], v[{b}:{b+3}], v[16:19]")
    stamp(3)
    a("v_lshlrev_b32 v15, 4, v2")
    a(f"s_add_u32 s28, s27, {PART}")
    a("v_add_u32 v20, s28, v15")
    a("v_and_b32 v21, 15, v2")
    a("v_lshlrev_b32 v22, 10, v9")
    a("v_lshl_add_u32 v22, v21, 4, v22")
    a("s_lshl_b32 s28, s3, 8")
    a("v_add_u32 v22, s28, v22")
    a("s_lshl_b32 s30, s25, 13")
    a(f"s_add_u32 s30, s30, {R1}")
    a("ds_write_b128 v20, v[16:19]")
    a("s_waitcnt lgkmcnt(0)")
    a("s_barrier")
    a("s_cmp_lg_u32 s3, 0")
    a("s_cbranch_scc1 L_nopub")
    a("ds_read_b128 v[24:27], v20 offset:1024")
    a("ds_read_b128 v[28:31], v20 offset:2048")
    a("ds_read_b128 v[32:35], v20 offset:3072")
    a("s_and_b32 s31, s22, 1")
    a("s_lshl_b32 s31, s31, 1")
    a("s_lshr_b32 s32, s22, 1")
    a("s_add_u32 s31, s31, s32")
    a("s_lshl_b32 s32, s24, 2")
    a("s_add_u32 s31, s31, s32")
    a("s_lshl_b32 s31, s31, 10")
    a("s_add_u32 s31, s31, s30")
    a("s_mov_b32 s48, 0x07060501")
    a("s_mov_b32 s49, 0x07060502")
    a("s_mov_b32 s50, 0x07060503")
    a("s_waitcnt lgkmcnt(0)")
    for r in range(4):
        a(f"v_add_f32 v{16+r}, v{16+r}, v{24+r}")
        a(f"v_add_f32 v{28+r}, v{28+r}, v{32+r}")
    for r in range(4):
        a(f"v_add_f32 v{16+r}, v{16+r}, v{28+r}")
    a("v_perm_b32 v24, v16, v19, s48")
    a("v_perm_b32 v25, v17, v19, s49")
    a("v_perm_b32 v26, v18, v19, s50")
    a("v_mov_b32 v27, s34")
    a(f"buffer_store_dwordx4 v[24:27], v15, s[44:47], s31 offen {st1}")
    lab("L_nopub")
    stamp(4)
    a("s_cmp_lg_u32 s24, 0")
    a("s_cbranch_scc1 L_fin" if stamps else "s_cbranch_scc1 L_end")
    a(f"s_mov_b32 s51, {maxpoll}")
    a("s_mov_b32 s52, 0x0c04000c")
    a("s_cmp_lg_u32 s26, 0")
    a("s_cbranch_scc1 L_gslow")
    lab("L_g")
    a(f"buffer_load_dwordx4 v[28:31], v22, s[44:47], s30 offen {ld1}")
    a("s_sub_u32 s51, s51, 1")
    a("s_cbranch_scc1 L_gdone")
    a("s_waitcnt vmcnt(0)")
    a("v_cmp_ne_u32 vcc, s34, v31")
    a("s_cbranch_vccnz L_g")
    lab("L_gdone")
    a("v_perm_b32 v31, v29, v28, s52")
    a("v_lshl_or_b32 v31, v30, 24, v31")
    lab("L_gjoin")
    stamp(5)
    a("s_nop 1")
    a("v_permlane32_swap_b32 v28, v30")
    a("v_permlane32_swap_b32 v29, v31")
    a("s_nop 1")
    a("v_permlane16_swap_b32 v28, v29")
    a("v_permlane16_swap_b32 v30, v31")
    a("v_lshrrev_b32 v23, 3, v21")
    a("v_lshlrev_b32 v23, 6, v23")
    a("v_add_f32 v28, v28, v29")
    a("v_add_f32 v30, v30, v31")
    a("v_cvt_pk_bf16_f32 v28, v28, v30")
    a("v_lshl_add_u32 v23, v9, 4, v23")
    a("v_lshlrev_b32 v29, 16, v28")
    a("v_and_b32 v30, 0xffff0000, v28")
    a("v_mul_f32 v31, 0xbfb8aa3b, v29")
    a("v_exp_f32 v31, v31")
    a("v_lshl_add_u32 v23, v7, 1, v23")
    a("v_add_f32 v31, 1.0, v31")
    a("v_rcp_f32 v31, v31")
    a("s_lshl_b32 s28, s3, 7")
    a("v_mul_f32 v31, v29, v31")
    a("v_cvt_pk_bf16_f32 v31, v31, v31")
    a(f"s_add_u32 s28, s28, {HBASE}")
    a("v_and_b32 v31, 0xffff0000, v31")
    a("v_mul_f32 v31, v31, v30")
    a("v_add_u32 v23, s28, v23")
    a("v_cvt_pk_bf16_f32 v31, v31, v31")
    a("ds_write_b16 v23, v31")
    a("s_waitcnt lgkmcnt(0)")
    a("s_barrier")
    stamp(6)
    a("s_cmp_lg_u32 s3, 0")
    a("s_cbranch_scc1 L_end")
    a("s_cmp_ge_u32 s2, 128")
    a("s_cbranch_scc1 L_fin" if stamps else "s_cbranch_scc1 L_end")
    a("s_mul_i32 s30, s2, 7168")
    a(f"s_add_u32 s30, s30, {R2}")
    a("s_add_u32 s31, s30, 4096")
    a("s_mov_b32 s40, s12")
    a("s_mov_b32 s41, s13")
    a("v_lshlrev_b32 v20, 11, v9")
    a("v_lshl_add_u32 v20, v7, 1, v20")
    a("s_lshl_b32 s32, s2, 4")
    lab("L_r")
    for n in range(7):
        so = "s30" if n < 4 else "s31"
        a(f"buffer_load_dwordx4 v[{32+4*n}:{35+4*n}], v15, s[44:47], {so} offen offset:{(n%4)*1024} {ld2}")
    a("s_sub_u32 s51, s51, 1")
    a("s_cbranch_scc1 L_rdone")
    a("s_waitcnt vmcnt(5)")
    a("v_xor_b32 v24, s34, v35")
    for n in range(1, 7):
        if n >= 2: a(f"s_waitcnt vmcnt({6-n})")
        a(f"v_xor_b32 v25, s34, v{35+4*n}")
        a("v_or_b32 v24, v24, v25")
    a("v_cmp_ne_u32 vcc, 0, v24")
    a("s_cbranch_vccnz L_r")
    lab("L_rdone")
    a("s_waitcnt vmcnt(0)")
    for n in range(7):
        b = 32+4*n
        a(f"v_perm_b32 v{b+3}, v{b+1}, v{b}, s52")
        a(f"v_lshl_or_b32 v{b+3}, v{b+2}, 24, v{b+3}")
    def padd(d, s):
        a(f"v_pk_add_f32 v[{d}:{d+1}], v[{d}:{d+1}], v[{s}:{s+1}]")
        a(f"v_pk_add_f32 v[{d+2}:{d+3}], v[{d+2}:{d+3}], v[{s+2}:{s+3}]")
    padd(32, 36); padd(40, 44); padd(48, 52); padd(32, 56); padd(40, 48); padd(32, 40)
    a("s_nop 1")
    a("v_permlane32_swap_b32 v32, v34")
    a("v_permlane32_swap_b32 v33, v35")
    a("s_nop 1")
    a("v_add_f32 v32, v32, v34")
    a("v_add_f32 v33, v33, v35")
    a("s_nop 1")
    a("v_permlane16_swap_b32 v32, v33")
    a("s_nop 1")
    a("v_add_f32 v32, v32, v33")
    a("s_nop 1")
    a("v_add_f32_dpp v32, v32, v32 row_ror:8 row_mask:0xf bank_mask:0xf")
    a("v_cvt_pk_bf16_f32 v32, v32, v32")
    a(f"buffer_store_short v32, v20, s[40:43], s32 offen {outfl}")
    stamp(7)
    a("s_cmp_lg_u32 s2, 0")
    a("s_cbranch_scc1 L_fin" if stamps else "s_cbranch_scc1 L_end")
    a("v_mov_b32 v24, s34")
    a("v_mov_b32 v25, 0")
    a("buffer_store_dword v24, v25, s[44:47], 0 offen sc1")
    if stamps:
        a("s_branch L_fin")
    else:
        a("s_endpgm")
    lab("L_gslow")
    a("s_add_u32 s31, s30, 4096")
    lab("L_g2")
    a(f"buffer_load_dwordx4 v[28:31], v22, s[44:47], s30 offen {ld1}")
    a(f"buffer_load_dwordx4 v[24:27], v22, s[44:47], s31 offen {ld1}")
    a("s_sub_u32 s51, s51, 1")
    a("s_cbranch_scc1 L_g2done")
    a("s_waitcnt vmcnt(0)")
    a("v_cmp_ne_u32 vcc, s34, v31")
    a("v_cmp_ne_u32 s[54:55], s34, v27")
    a("s_or_b64 vcc, vcc, s[54:55]")
    a("s_cbranch_vccnz L_g2")
    lab("L_g2done")
    a("s_waitcnt vmcnt(0)")
    a("v_perm_b32 v31, v29, v28, s52")
    a("v_lshl_or_b32 v31, v30, 24, v31")
    a("v_perm_b32 v27, v25, v24, s52")
    a("v_lshl_or_b32 v27, v26, 24, v27")
    for r in range(4):
        a(f"v_add_f32 v{28+r}, v{28+r}, v{24+r}")
    a("s_branch L_gjoin")
    lab("L_ph2")
    a("s_cmp_lg_u32 s24, 0")
    a("s_cbranch_scc1 L_end")
    a("s_sub_u32 s27, s3, 4")
    a("v_lshlrev_b32 v3, 11, v4")
    a("v_add_u32 v3, v3, v6")
    a(f"v_add_u32 v12, {HBASE}, v12")
    a("v_cndmask_b32 v12, v13, v12, vcc")
    a("s_lshl_b32 s29, s27, 13")
    a(f"s_add_u32 s29, s29, {WDBASE}")
    a("v_add_u32 v11, s29, v11")
    a("s_lshl_b32 s28, s22, 2")
    a("s_add_u32 s28, s28, s27")
    a("s_lshl_b32 s31, s25, 17")
    a("s_lshl_b32 s32, s28, 7")
    a("s_add_u32 s31, s31, s32")
    a("v_mul_u32_u24 v15, 7168, v4")
    a("v_lshl_add_u32 v15, v7, 4, v15")
    a("s_mul_i32 s30, s28, 57344")
    a("s_lshl_b32 s32, s25, 7")
    a("s_add_u32 s30, s30, s32")
    a(f"s_add_u32 s30, s30, {R2}")
    if prefetch:
        a("s_cmp_lg_u32 s3, 7")
        a("s_cbranch_scc1 L_nopf")
        a("s_getpc_b64 s[56:57]")
        a("s_and_b32 s56, s56, 0xfffff000")
        a("v_lshlrev_b32 v20, 6, v2")
        a("global_load_dword v21, v20, s[56:57]")
        lab("L_nopf")
    a("s_waitcnt lgkmcnt(0)")
    a("s_load_dword s34, s[16:17], 0")
    a("s_mov_b32 s36, s10")
    a("s_mov_b32 s37, s11")
    a("s_mov_b32 s44, s16")
    a("s_mov_b32 s45, s17")
    a("s_mov_b32 s46, 0x10000000" if stamps else "s_mov_b32 s46, 0x200000")
    a("s_mov_b32 s47, 0x20000")
    a("s_mov_b32 s48, 0x07060501")
    a("s_mov_b32 s49, 0x07060502")
    a("s_mov_b32 s50, 0x07060503")
    a("s_waitcnt lgkmcnt(0)")
    a("s_add_u32 s34, s34, 1")
    a("s_barrier")
    stamp(1)
    for j in range(8):
        a("s_mov_b32 m0, s29")
        a("s_add_u32 s29, s29, 1024")
        a("buffer_load_dwordx4 v3, s[36:39], s31 offen nt lds")
        if j < 7: a("s_add_u32 s31, s31, 16384")
    stamp(2)
    a("s_barrier")
    a(f"s_waitcnt vmcnt({8-pre})")
    for j in range(pre):
        b = 64 + 4*j
        a(f"ds_read_b64_tr_b16 v[{b}:{b+1}], v11 offset:{j*1024}")
        a(f"ds_read_b64_tr_b16 v[{b+2}:{b+3}], v11 offset:{j*1024+512}")
    stamp(3)
    a("v_mov_b32 v27, s34")
    a("s_barrier")
    stamp(4)
    for j in range(8):
        a(f"ds_read_b128 v[{32+4*j}:{35+4*j}], v12 offset:{j*64}")
    a("s_waitcnt vmcnt(0)")
    stamp(5)
    for j in range(pre, 8):
        b = 64 + 4*j
        a(f"ds_read_b64_tr_b16 v[{b}:{b+1}], v11 offset:{j*1024}")
        a(f"ds_read_b64_tr_b16 v[{b+2}:{b+3}], v11 offset:{j*1024+512}")
    a("s_waitcnt lgkmcnt(0)")
    for j in range(8):
        b = 64 + 4*j
        c = "0" if j == 0 else "v[16:19]"
        a(f"v_mfma_f32_16x16x32_bf16 v[16:19], v[{32+4*j}:{35+4*j}], v[{b}:{b+3}], {c}")
    a("s_nop 7")
    a("v_perm_b32 v24, v16, v19, s48")
    a("v_perm_b32 v25, v17, v19, s49")
    a("v_perm_b32 v26, v18, v19, s50")
    a(f"buffer_store_dwordx4 v[24:27], v15, s[44:47], s30 offen {st2}")
    stamp(6)
    if stamps:
        a("s_waitcnt vmcnt(0)")
        stamp(7)
        lab("L_fin")
        a("s_waitcnt lgkmcnt(0)")
        a("s_and_b32 s28, s3, 3")
        a("s_cmp_lg_u32 s28, 0")
        a("s_cbranch_scc1 L_end")
        a("s_lshl_b32 s28, s2, 6")
        a("s_lshl_b32 s29, s3, 3")
        a("s_add_u32 s28, s28, s29")
        a("s_add_u32 s28, s28, 0x8000000")
        a("v_mov_b32 v4, 0")
        a("s_mov_b64 exec, 1")
        for j in range(8):
            a(f"v_mov_b32 v5, s{64+2*j}")
            a(f"buffer_store_dword v5, v4, s[44:47], s28 offen offset:{4*j}")
    lab("L_end")
    a("s_endpgm")
    body = "\n".join(L)
    return f"""{HEADER}; Override launch geometry by editing the next line. Harness parses it; keep it on one line.
; @launch grid=(256,1,1) block=(512,1,1) lds={LDS}
.amdgcn_target "amdgcn-amd-amdhsa--gfx950"
.text
.globl {NAME}_kernel
.p2align 12
.type {NAME}_kernel,@function
{NAME}_kernel:
{body}
.section .rodata,"a"
.p2align 6
.amdhsa_kernel {NAME}_kernel
  .amdhsa_next_free_vgpr 128
  .amdhsa_next_free_sgpr 96
  .amdhsa_accum_offset 128
  .amdhsa_group_segment_fixed_size 0
  .amdhsa_kernarg_size 56
  .amdhsa_user_sgpr_count 2
  .amdhsa_user_sgpr_kernarg_segment_ptr 1
  .amdhsa_system_sgpr_workgroup_id_x 1
  .amdhsa_float_denorm_mode_32 3
.end_amdhsa_kernel
"""

if __name__ == "__main__":
    open("v1.s", "w").write(gen())
    open("v1_st.s", "w").write(gen(stamps=True))
```

```python
import sys, re
def amp(src, mult=10, base=400):
    s = src
    s = re.sub(r"(buffer_store_dword v5, v4, s\[44:47\], s28 offen offset:\d+)", r"\1 sc1", s)
    old = "L_end:\n    s_endpgm\n"
    assert s.count(old) == 1
    s = s.replace(old, "    s_cmp_eq_u32 s2, 0\n    s_cbranch_scc1 L_amp\n" + old)
    old = '.section .rodata,"a"\n'
    assert s.count(old) == 1
    new = f"""L_amp:
    s_waitcnt vmcnt(0)
    s_mov_b64 exec, -1
L_a0:
    s_memrealtime s[68:69]
    s_waitcnt lgkmcnt(0)
    s_sub_u32 s68, s68, s64
    s_cmp_lt_u32 s68, 900
    s_cbranch_scc1 L_a0
    v_lshlrev_b32 v4, 6, v2
    s_mov_b32 s28, 0x8000000
    v_mov_b32 v10, 0
    v_mov_b32 v11, 0
    s_mov_b32 s29, 4
L_a1:
    buffer_load_dword v8, v4, s[44:47], s28 offen sc1
    buffer_load_dword v9, v4, s[44:47], s28 offen offset:36 sc1
    s_waitcnt vmcnt(0)
    v_subrev_u32 v8, s64, v8
    v_subrev_u32 v9, s64, v9
    v_add_u32 v10, v10, v8
    v_max_i32 v11, v11, v9
    s_add_u32 s28, s28, 4096
    s_sub_u32 s29, s29, 1
    s_cmp_lg_u32 s29, 0
    s_cbranch_scc1 L_a1
    s_mov_b32 s70, 0
    s_mov_b32 s71, 0
    s_mov_b32 s29, 0
L_a2:
    s_nop 3
    v_readlane_b32 s72, v10, s29
    v_readlane_b32 s73, v11, s29
    s_nop 3
    s_add_u32 s70, s70, s72
    s_max_i32 s71, s71, s73
    s_add_u32 s29, s29, 1
    s_cmp_lt_u32 s29, 64
    s_cbranch_scc1 L_a2
    s_mul_i32 s71, s71, {mult}
    s_mul_i32 s70, s70, {mult}
    s_ashr_i32 s70, s70, 8
    s_sub_i32 s71, s71, s70
    s_sub_i32 s71, s71, {base*mult}
    s_max_i32 s71, s71, 0
    s_min_i32 s71, s71, 5000
    s_add_u32 s71, s71, 1500
L_a3:
    s_memrealtime s[68:69]
    s_waitcnt lgkmcnt(0)
    s_sub_u32 s68, s68, s64
    s_cmp_lt_u32 s68, s71
    s_cbranch_scc1 L_a3
    s_endpgm
""" + old
    return s.replace(old, new)
if __name__ == "__main__":
    for f in sys.argv[1:]:
        open(f.replace("_lt.s", "_amp.s"), "w").write(amp(open(f).read()))
```
